```python
import torch

def _softmax(x, axis=-1):
    return torch.softmax(x, dim=axis)
def _gelu(x):
    return torch.nn.functional.gelu(x, approximate="tanh")
def _silu(x):
    return torch.nn.functional.silu(x)
def _sigmoid(x):
    return torch.sigmoid(x)
def _layernorm(x, axis=-1, eps=1e-5):
    m = x.mean(dim=axis, keepdim=True)
    v = x.var(dim=axis, keepdim=True, unbiased=False)
    return (x - m) / torch.sqrt(v + eps)
def _scatter_add(tgt, idx, src, axis=0):
    return tgt.clone().index_add_(axis, idx, src)
def _segment_sum(src, seg, n):
    out = torch.zeros((n,) + src.shape[1:], dtype=src.dtype)
    return out.index_add_(0, seg, src)
def _pad(x, pw):
    flat = tuple(v for pair in reversed(pw) for v in pair)
    return torch.nn.functional.pad(x, flat)

kernel_name = 'standalone__sliding_window_attn__prompt'

def setup_inputs():

    _w = (lambda a: (lambda t: t.to(torch.bfloat16) if t.is_floating_point() else t)(torch.as_tensor(a)))
    B, H, S, D = 1, 16, 2048, 256
    return {
        "q": _w((lambda *s: torch.randn(*s, dtype=torch.bfloat16) * 0.8)(B, H, S, D)),
        "k": _w((lambda *s: torch.randn(*s, dtype=torch.bfloat16) * 0.8)(B, H, S, D)),
        "v": _w((lambda *s: torch.randn(*s, dtype=torch.bfloat16) * 0.05)(B, H, S, D)),
        "window": 256,
    }

def reference(q, k, v, window):
    B, H, S, D = q.shape
    scale = D ** -0.5
    scores = torch.einsum("bhqd,bhkd->bhqk", q, k) * scale
    idx = torch.arange(S)
    mask = (idx[:, None] - idx[None, :] >= 0) & (idx[:, None] - idx[None, :] < window)
    scores = torch.where(mask[None, None], scores, -1e9)
    p = _softmax(scores, axis=-1)
    return torch.einsum("bhqk,bhkd->bhqd", p, v)
```

```python
import sys, argparse, math

NAME = "standalone__sliding_window_attn__prompt_kernel"

class I:
    __slots__ = ("text", "kind", "cost", "rd", "wr", "lds", "vmem", "item", "need", "tag", "pairw")
    def __init__(s, text, kind, cost=4, rd=(), wr=(), lds=False, vmem=False, item=None, need=None, tag=None):
        s.text, s.kind, s.cost = text, kind, cost
        s.rd, s.wr = set(rd), set(wr)
        s.lds, s.vmem, s.item, s.need, s.tag = lds, vmem, item, need, tag
        s.pairw = None

def R(p, lo, n=1):
    return [f"{p}{lo+i}" for i in range(n)]
def F(p, lo, n=1):
    return f"{p}{lo}" if n == 1 else f"{p}[{lo}:{lo+n-1}]"

def is_lit(x):
    return isinstance(x, int)
def lit(x):
    x &= 0xFFFFFFFF
    if x <= 64: return str(x)
    if x >= 0xFFFFFFF0: return str(x - (1 << 32))
    return hex(x)
def opnd(x):
    return lit(x) if is_lit(x) else x
def regs_of(*xs):
    out = []
    for x in xs:
        if isinstance(x, str) and x[0] in "vsa" and x[1:].isdigit(): out.append(x)
        elif x in ("m0", "vcc"): out.append(x)
    return out

def valu2(op, d, a, b):
    return I(f"{op} {d}, {opnd(a)}, {opnd(b)}", "valu", 4, regs_of(a, b), [d])
def valu1(op, d, a):
    return I(f"{op} {d}, {opnd(a)}", "valu", 4, regs_of(a), [d])
def valu3(op, d, a, b, c):
    return I(f"{op} {d}, {opnd(a)}, {opnd(b)}, {opnd(c)}", "valu", 4, regs_of(a, b, c), [d])
def trans(op, d, a):
    return I(f"{op} {d}, {a}", "trans", 8, regs_of(a), [d])
def salu2(op, d, a, b):
    return I(f"{op} {d}, {opnd(a)}, {opnd(b)}", "salu", 4, regs_of(a, b), [d, "scc"])
def salu1(op, d, a):
    return I(f"{op} {d}, {opnd(a)}", "salu", 4, regs_of(a), [d])
def scmp(op, a, b):
    return I(f"{op} {opnd(a)}, {opnd(b)}", "salu", 4, regs_of(a, b), ["scc"])
def scsel(d, a, b):
    return I(f"s_cselect_b32 {d}, {opnd(a)}, {opnd(b)}", "salu", 4, regs_of(a, b) + ["scc"], [d])
def raw(text, kind="misc", cost=4, rd=(), wr=()):
    return I(text, kind, cost, rd, wr)
def nop(n):
    return I(f"s_nop {n}", "nop", 4 * (n + 1))

class Gen:
    def __init__(g, o):
        g.o = o
        g.widths = [int(x) for x in o.widths.split(",")]
        assert sum(g.widths) == 256 and all(w in (64, 128, 256) for w in g.widths)
        order = o.order.split(",")
        g.steps = []
        for t in order:
            if t[0] == "P": g.steps.append(("P", int(t[1])))
            else: g.steps.append(("U", {"A": 0, "B": 4, "C": 8}[t[0]] + int(t[1])))
        assert len(g.steps) == 9
        tiles = []
        for st in g.steps:
            tiles += [st[1]] if st[0] == "U" else [st[1], 9 + st[1]]
        assert sorted(tiles) == list(range(12)), tiles
        g.LA = o.la
        g.pro = []

    sQ, sK, sV, sO = 4, 8, 12, 16
    sW, sJ, sH = "s20", "s21", "s22"
    sW4096, sW2048, sW1024 = "s23", "s36", "s37"
    sTOFF = 24
    sOROW = 40
    sGT = 44
    sC, sNC, sNEG, sFLOOR = "s48", "s49", "s50", "s51"
    sT = ["s52", "s53", "s54", "s55", "s56", "s57"]
    sSTAMP = 96
    sMASK = 64
    vS = 16
    vO0 = 160
    vKp = 160
    vKc = 168
    vKd = 176
    vQt = 180
    vMT = 188
    vPT = 196
    vF = 224
    vL = 233
    vRUN, vRL, vTX, vTY = "v242", "v243", "v244", "v245"
    vVp128 = 246
    vVp64 = 250
    vVc = 252
    vVd128 = 1
    vVd64 = "v5"
    vSw = 6
    vSr, vSt = "v10", "v11"
    aQ = 0
    aF = 64
    NBUF = 8

    STAGE = 9 * 16384

    def Sreg(g, s, v): return g.vS + 16 * s + v
    def Preg(g, s):
        return g.vS + 16 * (s >> 1) + 8 * (s & 1)
    def Oreg(g, p):
        if p == 0: return g.vO0
        if g.widths[0] == 64:
            return [None, g.vS + 16 * 5, g.vS + 16 * 7, g.vO0 + 32][p]
        if g.widths == [128, 128]:
            return g.vS + 16 * 5
        return [None, g.vS + 16 * 5, g.vS + 16 * 7][p]

    def prologue(g):
        o = g.o
        P = g.pro
        A = P.append
        T = g.sT
        A(raw(f"s_cmp_ge_u32 s2, 256", "salu"))
        A(raw(f"s_cbranch_scc1 L_end", "salu"))
        A(raw("s_load_dwordx4 s[64:67], s[0:1], 0", "smem", wr=R("s", 64, 4)))
        A(raw("s_load_dwordx2 s[68:69], s[0:1], 16", "smem", wr=R("s", 68, 2)))
        A(raw("s_load_dwordx2 s[70:71], s[0:1], 32", "smem", wr=R("s", 70, 2)))
        if o.stamp:
            A(raw("s_load_dwordx2 s[72:73], s[0:1], 40", "smem", wr=R("s", 72, 2)))
            A(raw(f"s_memtime s[{g.sSTAMP}:{g.sSTAMP+1}]", "smem"))
        pt = g.vPT
        vlane, vhi, vlo, vt = "v0", f"v{pt}", f"v{pt+1}", f"v{pt+2}"
        t3, t4, t5 = f"v{pt+3}", f"v{pt+4}", f"v{pt+5}"
        A(valu2("v_lshrrev_b32", t3, 6, "v0"))
        A(valu2("v_and_b32", "v0", 63, "v0"))
        A(I(f"v_readfirstlane_b32 {g.sW}, {t3}", "valu", 4, [t3], [g.sW]))
        if o.map == 0:
            A(salu2("s_and_b32", T[0], "s2", 7))
            A(salu2("s_lshr_b32", T[1], "s2", 3))
            A(salu2("s_and_b32", g.sJ, T[1], 15))
            A(salu2("s_lshr_b32", T[1], T[1], 4))
            A(salu2("s_lshl_b32", T[0], T[0], 1))
            A(salu2("s_add_u32", g.sH, T[0], T[1]))
        else:
            A(salu2("s_and_b32", g.sJ, "s2", 15))
            A(salu2("s_lshr_b32", g.sH, "s2", 4))
        A(salu2("s_lshl_b32", g.sH, g.sH, 20))
        A(valu2("v_lshrrev_b32", vhi, 5, vlane))
        A(valu2("v_and_b32", vlo, 31, vlane))
        A(valu2("v_xor_b32", vt, vlo, vhi))
        A(valu2("v_lshlrev_b32", vt, 4, vt))
        A(valu2("v_lshlrev_b32", t3, 9, vhi))
        A(valu2("v_or_b32", vt, t3, vt))
        for n in range(4):
            A(valu2("v_xor_b32", f"v{g.vQt+n}", n << 5, vt))
            A(valu2("v_xor_b32", f"v{g.vQt+4+n}", (n << 5) ^ 128, vt))
        A(salu2("s_lshl_b32", g.sW4096, g.sW, 12))
        A(salu2("s_lshl_b32", g.sW2048, g.sW, 11))
        A(salu2("s_lshl_b32", g.sW1024, g.sW, 10))
        A(salu2("s_and_b32", T[0], g.sW, 1))
        A(salu2("s_lshl_b32", T[0], T[0], 7))
        for n in range(4):
            A(valu2("v_xor_b32", f"v{g.vKd+n}", T[0], f"v{g.vQt+n}"))
        A(salu2("s_lshl_b32", T[1], g.sJ, 16))
        A(salu2("s_lshl_b32", T[2], g.sW, 14))
        A(salu2("s_add_u32", T[3], T[1], T[2]))
        for n in range(4):
            A(salu2("s_add_u32", f"s{g.sOROW+n}", T[3], n * 4096))
        A(salu2("s_add_u32", T[4], T[1], g.sW4096))
        for t in range(12):
            A(salu2("s_add_u32", f"s{g.sTOFF+t}", T[4], (t * 16384 - 131072)))
            if t < 8:
                A(scmp("s_cmp_ge_u32", g.sJ, (8 - t + 3) // 4))
                A(scsel(f"s{g.sTOFF+t}", f"s{g.sTOFF+t}", 0x40000000))
        A(raw("s_waitcnt lgkmcnt(0)", "wait"))
        for (srd, src) in ((g.sQ, 64), (g.sK, 66), (g.sV, 68), (g.sO, 70)):
            A(salu2("s_add_u32", f"s{srd}", f"s{src}", g.sH))
            A(I(f"s_addc_u32 s{srd+1}, s{src+1}, 0", "salu", 4, [f"s{src+1}", "scc"], [f"s{srd+1}", "scc"]))
            A(salu1("s_mov_b32", f"s{srd+2}", 0x100000))
            A(salu1("s_mov_b32", f"s{srd+3}", 0x20000))
        A(salu2("s_lshl_b32", T[5], g.sW, 14))
        A(salu2("s_add_u32", T[5], T[5], 6 * 16384))
        g.qinstr = []
        for m in range(4):
            A(salu2("s_add_u32", "m0", T[5], m * 4096))
            A(salu1("s_mov_b32", T[0], f"s{g.sOROW+m}"))
            for n in range(4):
                ins = g.dma(f"v{g.vQt + 4*(m&1) + n}", g.sQ, T[0], n * 1024, ("Q",), o.qhint)
                A(ins)

    def dma(g, voff, srd, soff, imm, item, hint):
        h = (" " + hint) if hint else ""
        off = f" offset:{imm}" if imm else ""
        return I(f"buffer_load_dwordx4 {voff}, s[{srd}:{srd+3}], {soff} offen{off}{h} lds", "dma", g.o.dmacost,
                 [voff, soff, "m0"] + R("s", srd, 4), [], vmem=True, item=item)

    def prologue2(g):
        o = g.o
        out = []
        A = out.append
        T = g.sT
        pt = g.vPT
        vlane, vhi, vlo, vt = "v0", f"v{pt}", f"v{pt+1}", f"v{pt+2}"
        t3, t4, t5 = f"v{pt+3}", f"v{pt+4}", f"v{pt+5}"
        A(salu1("s_mov_b32", g.sC, 0x3DB8AA3B))
        A(salu1("s_mov_b32", g.sNC, 0xBDB8AA3B))
        A(salu1("s_mov_b32", g.sNEG, 0xF1800000))
        A(salu1("s_mov_b32", g.sFLOOR, 0xD3800000))
        for i in range(3):
            A(scmp("s_cmp_gt_u32", g.sW, i))
            A(scsel(f"s{g.sGT+i}", -1, 0))
        A(valu2("v_and_b32", t3, 15, vlo))
        A(valu2("v_xor_b32", t3, t3, vhi))
        A(valu2("v_lshlrev_b32", t3, 4, t3))
        A(valu2("v_lshlrev_b32", t4, 9, vlo))
        A(valu2("v_or_b32", t3, t3, t4))
        for i in range(8):
            A(valu2("v_xor_b32", f"v{g.vKp+i}", i << 5, t3))
        vr, vg, vc = f"v{pt+6}", f"v{pt+7}", f"v{pt+8}"
        A(valu2("v_lshrrev_b32", vr, 2, vlane)); A(valu2("v_and_b32", vr, 3, vr))
        A(valu2("v_lshrrev_b32", vg, 4, vlane)); A(valu2("v_and_b32", vg, 1, vg))
        A(valu2("v_and_b32", vc, 3, vlane))
        A(valu2("v_lshlrev_b32", t3, 5, vg))
        A(valu2("v_and_b32", t4, 1, vc)); A(valu2("v_lshlrev_b32", t4, 4, t4)); A(valu2("v_or_b32", t3, t3, t4))
        A(valu2("v_lshrrev_b32", t4, 1, vc)); A(valu2("v_lshlrev_b32", t4, 3, t4)); A(valu2("v_or_b32", t3, t3, t4))
        A(valu2("v_lshlrev_b32", t4, 2, vhi)); A(valu2("v_or_b32", t4, t4, vr))
        wide = [w for w in g.widths if w >= 128]
        assert len(set(wide)) <= 1
        if wide:
            sh = 8 if wide[0] == 128 else 9
            A(valu2("v_lshlrev_b32", t5, sh, t4)); A(valu2("v_or_b32", t5, t5, t3))
            A(valu2("v_lshlrev_b32", vt, 6, vr)); A(valu2("v_or_b32", t5, t5, vt))
            for b in range(4):
                A(valu2("v_xor_b32", f"v{g.vVp128+b}", b << 6, t5))
        if 64 in g.widths:
            A(valu2("v_lshlrev_b32", t5, 7, t4)); A(valu2("v_or_b32", t5, t5, t3))
            A(valu2("v_lshrrev_b32", vt, 1, vr)); A(valu2("v_lshlrev_b32", vt, 6, vt)); A(valu2("v_or_b32", t5, t5, vt))
            for b in range(2):
                A(valu2("v_xor_b32", f"v{g.vVp64+b}", b << 6, t5))
        if wide:
            if wide[0] == 128:
                A(valu2("v_lshrrev_b32", t3, 4, vlane))
                A(valu2("v_and_b32", t4, 15, vlane))
                A(valu2("v_lshlrev_b32", t5, 2, t3)); A(valu2("v_xor_b32", t4, t4, t5))
                A(valu2("v_lshlrev_b32", t4, 4, t4))
                A(valu2("v_lshlrev_b32", t3, 9, t3))
                A(valu2("v_or_b32", f"v{g.vVd128}", t3, t4))
                A(valu2("v_add_u32", f"v{g.vVd128+1}", 1024, f"v{g.vVd128}"))
            else:
                for n in range(2):
                    A(valu2("v_add_u32", t3, 2 * n, vhi))
                    A(valu2("v_lshlrev_b32", t3, 2, t3))
                    A(valu2("v_xor_b32", t3, t3, vlo))
                    A(valu2("v_lshlrev_b32", t3, 4, t3))
                    A(valu2("v_lshlrev_b32", t4, 9, vhi))
                    A(valu2("v_or_b32", f"v{g.vVd128+n}", t3, t4))
        if 64 in g.widths:
            A(valu2("v_lshrrev_b32", t3, 3, vlane))
            A(valu2("v_lshlrev_b32", t3, 9, t3))
            A(valu2("v_and_b32", t4, 7, vlane))
            A(valu2("v_lshlrev_b32", t5, 2, vg))
            A(valu2("v_xor_b32", t4, t4, t5))
            A(valu2("v_lshlrev_b32", t4, 4, t4))
            A(valu2("v_or_b32", g.vVd64, t3, t4))
            col0 = 0
            for w in g.widths:
                if w == 64: break
                col0 += w
            if col0: A(valu2("v_add_u32", g.vVd64, col0 * 2, g.vVd64))
        A(valu2("v_and_b32", t3, 7, vlo)); A(valu2("v_xor_b32", t3, t3, vhi)); A(valu2("v_lshlrev_b32", t3, 4, t3))
        A(valu2("v_lshlrev_b32", t4, 7, vlo)); A(valu2("v_or_b32", t3, t3, t4))
        A(salu2("s_add_u32", T[0], g.sW4096, g.STAGE))
        A(valu2("v_add_u32", t3, T[0], t3))
        for k in range(4):
            A(valu2("v_xor_b32", f"v{g.vSw+k}", k << 5, t3))
        A(valu2("v_lshrrev_b32", t3, 3, vlane))
        A(valu2("v_and_b32", t4, 7, vlane))
        A(valu2("v_xor_b32", t5, t4, t3)); A(valu2("v_lshlrev_b32", t5, 4, t5))
        A(valu2("v_lshlrev_b32", vt, 7, t3)); A(valu2("v_or_b32", t5, t5, vt))
        A(valu2("v_add_u32", g.vSr, T[0], t5))
        A(valu2("v_lshlrev_b32", t3, 9, t3)); A(valu2("v_lshlrev_b32", t4, 4, t4))
        A(valu2("v_or_b32", g.vSt, t3, t4))
        A(valu2("v_lshlrev_b32", t3, 2, vhi))
        A(valu2("v_sub_u32", t3, vlo, t3))
        for v in range(16):
            k = (v & 3) + 8 * (v >> 2)
            A(I(f"v_cmp_ge_i32 s[{g.sMASK+2*v}:{g.sMASK+2*v+1}], {t3}, {k}", "valu", 4, [t3], R("s", g.sMASK + 2 * v, 2)))
        va, vb = f"v{pt+9}", f"v{pt+10}"
        A(salu2("s_lshl_b32", T[5], g.sJ, 2))
        A(salu2("s_add_u32", T[4], g.sW, 8))
        for s, st in enumerate(g.steps):
            if st[0] == "U":
                A(salu1("s_mov_b32", T[0], st[1]))
            else:
                A(scmp("s_cmp_gt_u32", g.sW, st[1]))
                A(scsel(T[0], 9 + st[1], st[1]))
            diag = not (st[0] == "U" and 4 <= st[1] <= 7)
            A(salu2("s_add_u32", T[1], T[0], T[5]))
            A(scmp("s_cmp_lt_u32", T[1], 8))
            A(scsel(T[2], g.sNEG, 0))
            if diag:
                A(scmp("s_cmp_eq_u32", T[0], T[4]))
                A(scsel(T[1], g.sNEG, T[2]))
                A(scmp("s_cmp_eq_u32", T[0], g.sW))
                A(scsel(T[3], g.sNEG, T[2]))
                A(valu1("v_mov_b32", va, T[1]))
                A(valu1("v_mov_b32", vb, T[3]))
                for v in range(16):
                    m = g.sMASK + 2 * v
                    A(I(f"v_cndmask_b32 v{g.Sreg(s,v)}, {va}, {vb}, s[{m}:{m+1}]", "valu", 4,
                        [va, vb] + R("s", m, 2), [f"v{g.Sreg(s,v)}"]))
            else:
                for v in range(16):
                    A(valu1("v_mov_b32", f"v{g.Sreg(s,v)}", T[2]))
        A(valu1("v_mov_b32", g.vRUN, 0x7F000000))
        return out

    def softmax_tile(g, s):
        S = [f"v{g.Sreg(s,v)}" for v in range(16)]
        m = [f"v{g.vMT+i}" for i in range(5)]
        nm, l = f"v{g.vF+s}", f"v{g.vL+s}"
        out = []
        A = out.append
        for i in range(5):
            A(valu3("v_max3_f32", m[i], S[3*i], S[3*i+1], S[3*i+2]))
        A(valu3("v_max3_f32", m[0], m[0], m[1], S[15]))
        A(valu3("v_max3_f32", m[2], m[2], m[3], m[4]))
        A(valu3("v_max3_f32", m[0], m[0], m[2], g.sFLOOR))
        A(valu2("v_mul_f32", nm, g.sNC, m[0]))
        A(valu2("v_min_f32", g.vRUN, g.vRUN, nm))
        for v in range(19):
            if v < 16: A(valu3("v_fma_f32", S[v], S[v], g.sC, nm))
            if 0 <= v - 1 < 16: A(trans("v_exp_f32", S[v-1], S[v-1]))
            if v - 3 == 1: A(valu2("v_add_f32", l, S[0], S[1]))
            elif 1 < v - 3 < 16: A(valu2("v_add_f32", l, l, S[v-3]))
        return out

    def boundary(g):
        out = []
        A = out.append
        A(valu1("v_mov_b32", g.vTX, g.vRUN))
        A(nop(1))
        A(I(f"v_permlane32_swap_b32 {g.vRUN}, {g.vTX}", "perm", 4, [g.vRUN, g.vTX], [g.vRUN, g.vTX]))
        A(valu2("v_min_f32", g.vRUN, g.vRUN, g.vTX))
        for t in range(9):
            A(valu2("v_sub_f32", f"v{g.vF+t}", g.vRUN, f"v{g.vF+t}"))
        for t in range(9):
            A(trans("v_exp_f32", f"v{g.vF+t}", f"v{g.vF+t}"))
        A(valu2("v_mul_f32", g.vRL, f"v{g.vF}", f"v{g.vL}"))
        for t in range(1, 9):
            A(valu3("v_fma_f32", g.vRL, f"v{g.vF+t}", f"v{g.vL+t}", g.vRL))
        A(valu1("v_mov_b32", g.vTX, g.vRL))
        A(nop(1))
        A(I(f"v_permlane32_swap_b32 {g.vRL}, {g.vTX}", "perm", 4, [g.vRL, g.vTX], [g.vRL, g.vTX]))
        A(valu2("v_add_f32", g.vRL, g.vRL, g.vTX))
        A(trans("v_rcp_f32", g.vRL, g.vRL))
        A(nop(0))
        for t in range(9):
            A(valu2("v_mul_f32", f"v{g.vF+t}", f"v{g.vF+t}", g.vRL))
        return out

    def conv(g, s):
        S = [f"v{g.Sreg(s,v)}" for v in range(16)]
        halves = []
        for hf in range(2):
            out = []
            for v in range(8 * hf, 8 * hf + 8):
                out.append(valu2("v_mul_f32", S[v], S[v], f"v{g.vF+s}"))
            for i in range(4 * hf, 4 * hf + 4):
                out.append(valu3c(f"v{g.Preg(s)+i}", S[2*i], S[2*i+1]))
            halves.append(out)
        return halves

    def epilogue_round(g, p, rho, colbytes):
        O = g.Oreg(p) + 32 * rho
        out = []
        A = out.append
        for k in range(4):
            for u in range(4):
                d = 4 * k + u
                A(valu3c(f"v{O+d}", f"v{O+2*d}", f"v{O+2*d+1}"))
            A(I(f"ds_write_b128 v{g.vSw+k}, {F('v',O+4*k,4)}", "dsw", g.o.dswcost, [f"v{g.vSw+k}"] + R("v", O + 4 * k, 4), [], lds=True))
        for n in range(4):
            A(I(f"ds_read_b128 {F('v',O+16+4*n,4)}, {g.vSr}" + (f" offset:{n*1024}" if n else ""), "dsr", 4,
                [g.vSr], R("v", O + 16 + 4 * n, 4), lds=True))
        h = (" " + g.o.ohint) if g.o.ohint else ""
        for n in range(4):
            off = f" offset:{colbytes}" if colbytes else ""
            A(I(f"buffer_store_dwordx4 {F('v',O+16+4*n,4)}, {g.vSt}, s[{g.sO}:{g.sO+3}], s{g.sOROW+n} offen{off}{h}", "store", 8,
                [g.vSt, f"s{g.sOROW+n}"] + R("v", O + 16 + 4 * n, 4) + R("s", g.sO, 4), [], vmem=True, item=("O",)))
        return out

    def build(g):
        o = g.o
        LA = g.LA
        g.prologue()
        steps = g.steps
        mf = []
        for s in range(9):
            for kk in range(16):
                mf.append(dict(ph="K", s=s, kk=kk))
        col = 0
        passes = []
        for p, w in enumerate(g.widths):
            nb = w // 32
            first = len(mf)
            for s in range(9):
                if s == 8: ordr = [(b, kh) for b in range(nb) for kh in range(2)]
                else: ordr = [(b, kh) for kh in range(2) for b in range(nb)]
                for (b, kh) in ordr:
                    mf.append(dict(ph="V", p=p, s=s, b=b, kh=kh, w=w))
            passes.append(dict(p=p, w=w, col=col, first=first, last=len(mf) - 1))
            col += w
        NM = len(mf)
        items = []
        for s, st in enumerate(steps):
            for T in ([st[1]] if st[0] == "U" else [st[1], 9 + st[1]]):
                items.append(dict(key=("K", T), units=4, T=T, s=s))
        for ps in passes:
            for s, st in enumerate(steps):
                for T in ([st[1]] if st[0] == "U" else [st[1], 9 + st[1]]):
                    items.append(dict(key=("V", ps["p"], T), units=ps["w"] // 64, T=T, s=s, p=ps["p"], w=ps["w"], col=ps["col"]))
        bykey = {it["key"]: it for it in items}
        def mf_items(m):
            d = mf[m]
            st = steps[d["s"]]
            Ts = [st[1]] if st[0] == "U" else [st[1], 9 + st[1]]
            if d["ph"] == "K": return [("K", T) for T in Ts]
            return [("V", d["p"], T) for T in Ts]
        for m in range(NM):
            for k in mf_items(m):
                bykey[k]["lastm"] = m
                bykey[k].setdefault("firstm", m)
        bars = []
        for s in range(9):
            bars.append(16 * s + 16 - LA - 1)
        for ps in passes:
            n = ps["last"] - ps["first"] + 1
            per = o.vbar if ps["w"] == 64 else o.vbar_wide
            x = ps["first"] + per - LA - 1
            while x < ps["last"] + 1 - 0:
                if x > bars[-1] + 3: bars.append(x)
                x += per
        bars = [b for b in bars if b < NM - LA - 1]
        bars = sorted(set(bars))
        g.bars = bars
        def readgap(m): return m - LA
        allbars = [-(LA + 1)] + bars
        need = {}
        for bi, b in enumerate(allbars):
            nxt = allbars[bi + 1] if bi + 1 < len(allbars) else NM
            ks = set()
            for m in range(NM):
                if b <= readgap(m) < nxt: ks.update(mf_items(m))
            need[b] = ks
        NU = 40
        busy = [None] * NU
        for u in range(24, 40): busy[u] = "Q"
        head = [0]
        nxt_item = [0]
        dma_at = {}
        def try_alloc(bar):
            lst = []
            while nxt_item[0] < len(items):
                it = items[nxt_item[0]]
                lim = 40 if it["key"][0] == "K" else 36
                h = head[0]
                if h + it["units"] > lim: h = 0
                if any(busy[u] is not None for u in range(h, h + it["units"])): break
                if o.maxfly and len(lst) >= o.maxfly and bar != "init": break
                for u in range(h, h + it["units"]): busy[u] = it["key"]
                it["base"] = h * 4096
                head[0] = h + it["units"]
                lst.append(it)
                nxt_item[0] += 1
            dma_at[bar] = lst
        try_alloc("init")
        for b in allbars:
            for u in range(NU):
                k = busy[u]
                if k == "Q": busy[u] = None
                elif k is not None and bykey[k]["lastm"] <= b: busy[u] = None
            try_alloc(b)
        assert nxt_item[0] == len(items), "ring allocation did not finish"
        for b in allbars:
            for k in need[b]:
                assert "base" in bykey[k]
        vcol_state = {"wide": 0, "n64": None}
        def dma_instrs(it):
            out = []
            if it["key"][0] == "K":
                out.append(salu2("s_add_u32", "m0", g.sW4096, it["base"]))
                for n in range(4):
                    out.append(g.dma(f"v{g.vKd+n}", g.sK, f"s{g.sTOFF+it['T']}", n * 1024, it["key"], o.khint))
            else:
                w = it["w"]
                if w == 64:
                    if vcol_state["n64"] is None: vcol_state["n64"] = it["col"]
                    if it["col"] != vcol_state["n64"]:
                        out.append(valu2("v_add_u32", g.vVd64, (it["col"] - vcol_state["n64"]) * 2, g.vVd64))
                        vcol_state["n64"] = it["col"]
                    out.append(salu2("s_add_u32", "m0", g.sW1024, it["base"]))
                    out.append(g.dma(g.vVd64, g.sV, f"s{g.sTOFF+it['T']}", 0, it["key"], o.vhint))
                elif w == 128:
                    if it["col"] != vcol_state["wide"]:
                        for n in range(2):
                            out.append(valu2("v_add_u32", f"v{g.vVd128+n}", (it["col"] - vcol_state["wide"]) * 2, f"v{g.vVd128+n}"))
                        vcol_state["wide"] = it["col"]
                    out.append(salu2("s_add_u32", "m0", g.sW2048, it["base"]))
                    for n in range(2):
                        out.append(g.dma(f"v{g.vVd128+n}", g.sV, f"s{g.sTOFF+it['T']}", n * 1024, it["key"], o.vhint))
                else:
                    out.append(salu2("s_add_u32", "m0", g.sW4096, it["base"]))
                    for n in range(4):
                        out.append(g.dma(f"v{g.vVd128+(n&1)}", g.sV, f"s{g.sTOFF+it['T']}", n * 1024, it["key"], o.vhint))
            return out
        for it in dma_at["init"]:
            g.pro += dma_instrs(it)
        g.pro += g.prologue2()
        T = g.sT
        P = g.pro
        P.append(salu2("s_lshl_b32", T[0], g.sW, 14))
        P.append(salu2("s_add_u32", T[0], T[0], 6 * 16384))
        for i in range(8):
            P.append(valu2("v_add_u32", f"v{g.vKc+i}", T[0], f"v{g.vKp+i}"))
        wq = I("VMWAIT", "wait", 4, need={("Q",)})
        P.append(wq)
        if o.stamp: P.append(I("STAMP", "stamp"))
        for kk in range(16):
            P.append(I(f"ds_read_b128 {F('a',g.aQ+4*kk,4)}, v{g.vKc+(kk&7)}" + (f" offset:{256*(kk>>3)}" if kk >> 3 else ""),
                       "dsr", 4, [f"v{g.vKc+(kk&7)}"], R("a", g.aQ + 4 * kk, 4), lds=True, tag="q"))
        P.append(I("s_waitcnt lgkmcnt(0)", "wait0"))

        kstate = {"R": None}
        vstate = {"R": None, "w": None}
        def paired_base(i, bA, bC, dst):
            return [salu2("s_and_b32", dst, f"s{g.sGT+i}", (bC - bA)), salu2("s_add_u32", dst, dst, bA)]
        def k_addr(s):
            st = steps[s]
            if st[0] == "U":
                B = bykey[("K", st[1])]["base"]
                if kstate["R"] is not None and 0 <= B - kstate["R"] <= 65535 - 256 - 0:
                    return [], None, B - kstate["R"]
                kstate["R"] = B
                return [], [valu2("v_add_u32", f"v{g.vKc+i}", B, f"v{g.vKp+i}") for i in range(8)], 0
            i = st[1]
            pre = paired_base(i, bykey[("K", i)]["base"], bykey[("K", 9 + i)]["base"], T[1])
            kstate["R"] = None
            return pre, [valu2("v_add_u32", f"v{g.vKc+j}", T[1], f"v{g.vKp+j}") for j in range(8)], 0
        def v_addr(p, s, w):
            st = steps[s]
            nr = 2 if w == 64 else 4
            pat = g.vVp64 if w == 64 else g.vVp128
            inner = {64: 3072, 128: 6144, 256: 12288 + 256}[w]
            if st[0] == "U":
                B = bykey[("V", p, st[1])]["base"]
                if vstate["R"] is not None and vstate["w"] == w and 0 <= B - vstate["R"] <= 65535 - inner:
                    return [], None, B - vstate["R"]
                vstate["R"], vstate["w"] = B, w
                return [], [valu2("v_add_u32", f"v{g.vVc+i}", B, f"v{pat+i}") for i in range(nr)], 0
            i = st[1]
            pre = paired_base(i, bykey[("V", p, i)]["base"], bykey[("V", p, 9 + i)]["base"], T[2])
            vstate["R"], vstate["w"] = None, w
            return pre, [valu2("v_add_u32", f"v{g.vVc+j}", T[2], f"v{pat+j}") for j in range(nr)], 0

        fixed = {x: [] for x in range(-LA - 1, NM)}
        cur = None
        for m in range(NM):
            d = mf[m]
            buf = g.aF + 4 * (m % g.NBUF)
            gp = readgap(m)
            if d["ph"] == "K":
                key = ("K", d["s"])
                if key != cur:
                    cur = key
                    pre, upd, immb = k_addr(d["s"])
                    done = set()
                    fixed[gp] += pre
                i = d["kk"] & 7
                if upd is not None and i not in done:
                    fixed[gp].append(upd[i]); done.add(i)
                imm = immb + 256 * (d["kk"] >> 3)
                r = I(f"ds_read_b128 {F('a',buf,4)}, v{g.vKc+i}" + (f" offset:{imm}" if imm else ""), "dsr", 4,
                      [f"v{g.vKc+i}"], R("a", buf, 4), lds=True)
                fixed[gp].append(r)
                Sb = g.Sreg(d["s"], 0)
                d["ins"] = I(f"v_mfma_f32_32x32x16_bf16 {F('v',Sb,16)}, {F('a',buf,4)}, {F('a',g.aQ+4*d['kk'],4)}, {F('v',Sb,16)}",
                             "mfma", 8, R("a", buf, 4) + R("a", g.aQ + 4 * d["kk"], 4) + R("v", Sb, 16), R("v", Sb, 16))
            else:
                w, p, s, b, kh = d["w"], d["p"], d["s"], d["b"], d["kh"]
                key = ("V", p, s)
                if key != cur:
                    cur = key
                    pre, upd, immb = v_addr(p, s, w)
                    done = set()
                    fixed[gp] += pre
                i = b & 1 if w == 64 else b & 3
                if upd is not None and i not in done:
                    fixed[gp].append(upd[i]); done.add(i)
                rowb = 2 * w
                for mm in range(2):
                    imm = immb + (2 * kh + mm) * 8 * rowb + (256 * (b >> 2) if w == 256 else 0)
                    r = I(f"ds_read_b64_tr_b16 {F('a',buf+2*mm,2)}, v{g.vVc+i}" + (f" offset:{imm}" if imm else ""), "dsr", 4,
                          [f"v{g.vVc+i}"], R("a", buf + 2 * mm, 2), lds=True)
                    fixed[gp].append(r)
                Ob = g.Oreg(p) + 16 * b
                Pb = g.Preg(s) + 4 * kh
                firstacc = (s == 0 and kh == 0)
                c = "0" if firstacc else F("v", Ob, 16)
                d["ins"] = I(f"v_mfma_f32_32x32x16_bf16 {F('v',Ob,16)}, {F('a',buf,4)}, {F('v',Pb,4)}, {c}",
                             "mfma", 8, R("a", buf, 4) + R("v", Pb, 4) + ([] if firstacc else R("v", Ob, 16)), R("v", Ob, 16))

        valu_q = []
        for s in range(8):
            for ins in g.softmax_tile(s): valu_q.append((16 * (s + 1) + 1, min(16 * (s + 2) + 2, 144), ins))
        KEND = 143
        bnd = g.softmax_tile(8) + g.boundary()
        h0 = g.conv(0)
        bnd += h0[0] + h0[1]
        V0 = passes[0]["first"]
        nb0 = g.widths[0] // 32
        for s in range(1, 9):
            hs = g.conv(s)
            first = V0 + s * 2 * nb0
            d2 = first + (nb0 if s != 8 else 1)
            e = V0 + (s - 1) * 2 * nb0 - 1
            for ins in hs[0]: valu_q.append((e, first, ins))
            for ins in hs[1]: valu_q.append((e, d2, ins))
        epi_q = []
        tail = []
        for ps in passes:
            rounds = ps["w"] // 64
            lst = []
            for rho in range(rounds):
                lst += g.epilogue_round(ps["p"], rho, (ps["col"] + 64 * rho) * 2)
            if ps["p"] + 1 < len(passes):
                for ins in lst: epi_q.append((ps["last"] + 2, None, ins))
            else:
                tail = lst

        L = list(g.pro)
        dma_q = []
        def emit_bar(b):
            L.append(I("VMWAIT", "wait", 4, need=need[b]))
            L.append(I("s_barrier", "barrier", 4))
            if o.stamp: L.append(I("STAMP", "stamp"))
            for it in dma_at[b]: dma_q.extend(dma_instrs(it))
        def emit_dma(maxn):
            n = 0
            while dma_q and n < maxn:
                ins = dma_q.pop(0)
                L.append(ins)
                if ins.kind == "dma": n += 1
            return n
        b0 = allbars[0]
        emit_bar(b0)
        for x in range(-LA - 1, 0):
            L.extend(fixed[x])
            emit_dma(o.dma_pre)
        for m in range(NM):
            while valu_q and valu_q[0][1] is not None and valu_q[0][1] <= m:
                L.append(valu_q.pop(0)[2])
            if m == KEND + 1:
                L.extend(bnd)
            L.append(mf[m]["ins"])
            budget = (o.budk if mf[m]["ph"] == "K" else o.budv)
            if m in bars:
                emit_bar(m); budget -= 8
            for ins in fixed[m]:
                L.append(ins); budget -= ins.cost
            if dma_q:
                k = len(L)
                emit_dma(o.dma_per_gap)
                budget -= sum(i.cost for i in L[k:])
            while budget > 0:
                if valu_q and valu_q[0][0] <= m:
                    ins = valu_q.pop(0)[2]
                elif epi_q and epi_q[0][0] <= m:
                    ins = epi_q.pop(0)[2]
                else: break
                L.append(ins); budget -= ins.cost
        assert not valu_q
        emit_dma(1000)
        for e in epi_q: L.append(e[2])
        L.extend(tail)
        if o.stamp: L.append(I("STAMP", "stamp"))
        g.L = L

    def skeletonize(g):
        keep = []
        npro = len(g.pro)
        for idx, ins in enumerate(g.L):
            if idx < npro: keep.append(ins); continue
            if ins.kind == "mfma" and g.o.skel & 1: continue
            if ins.kind in ("dsr", "dsw") and g.o.skel & 2: continue
            if ins.kind in ("valu", "trans", "perm") and g.o.skel & 4 and not any(r in ins.wr for r in ([g.vVd64] + R("v", g.vVd128, 2) + R("v", g.vVc, 4) + R("v", g.vKc, 8))): continue
            if ins.kind == "store" and g.o.skel & 8: continue
            keep.append(ins)
        g.L = keep

    def resolve_waits(g):
        L = g.L
        out = []
        lds_out = []
        vm = []
        vm_done = 0
        stampn = [1]
        n = len(L)
        for i, ins in enumerate(L):
            if ins.text == "VMWAIT":
                last = -1
                for j, it in enumerate(vm):
                    if it in ins.need: last = j
                if last >= vm_done:
                    N = len(vm) - 1 - last
                    assert N <= 63
                    out.append(I(f"s_waitcnt vmcnt({N})", "wait", 4))
                    vm_done = last + 1
                continue
            if ins.text == "STAMP":
                k = g.sSTAMP + 0
                out.append(I("s_waitcnt lgkmcnt(0)", "wait", 4)); lds_out = []
                out.append(raw(f"s_memtime s[62:63]", "smem"))
                out.append(I("s_waitcnt lgkmcnt(0)", "wait", 4))
                out.append(raw(f"s_sub_u32 s62, s62, s{g.sSTAMP}", "salu"))
                out.append(raw(f"v_writelane_b32 v12, s62, {stampn[0]}", "valu", 4, [], ["v12"]))
                stampn[0] += 1
                continue
            if ins.kind == "wait0":
                out.append(ins); lds_out = []; continue
            touched = ins.rd | ins.wr
            last = -1
            for j, dst in enumerate(lds_out):
                if dst & touched: last = j
            if last >= 0:
                if ins.kind == "mfma" and g.o.pair > 1:
                    cnt = 0
                    for k2 in range(i + 1, n):
                        if L[k2].kind == "mfma":
                            cnt += 1
                            t2 = L[k2].rd
                            for j, dst in enumerate(lds_out):
                                if dst & t2 and j > last: last = j
                            if cnt >= g.o.pair - 1: break
                N = len(lds_out) - 1 - last
                assert N <= 15, N
                out.append(I(f"s_waitcnt lgkmcnt({N})", "wait", 4))
                lds_out = lds_out[last + 1:]
            if ins.lds:
                lds_out.append(set(ins.wr))
                if len(lds_out) > 15:
                    out.append(I(f"s_waitcnt lgkmcnt(14)", "wait", 4))
                    lds_out = lds_out[-15:]
            if ins.vmem: vm.append(ins.item)
            out.append(ins)
        g.L = out
        g.nstamps = stampn[0]

    def hazards(g):
        out = []
        def dist_back(pred, maxd):
            d = 0
            for x in reversed(out):
                if pred(x): return d
                d += (int(x.text.split()[1]) + 1) if x.kind == "nop" else 1
                if d >= maxd: return None
            return None
        VAL = ("valu", "trans", "perm")
        nins = 0
        for ins in g.L:
            req = 0
            def need(pred, n):
                nonlocal req
                d = dist_back(pred, n)
                if d is not None and d < n: req = max(req, n - d)
            rd, wr = ins.rd, ins.wr
            vr = {r for r in rd if r[0] in "va" and r != "vcc"}
            vw = {r for r in wr if r[0] in "va" and r != "vcc"}
            sr = {r for r in rd if r[0] == "s" and r != "scc"}
            if ins.kind == "mfma":
                need(lambda x: x.kind in VAL and x.wr & vr, 2)
                dset = vw
                ab = vr - dset
                need(lambda x: x.kind == "mfma" and x.wr & ab, 12)
                need(lambda x: x.kind == "mfma" and (x.wr & dset) and x.wr != dset, 10)
                need(lambda x: x.kind == "mfma" and x.wr == dset and not (dset <= vr), 12)
                need(lambda x: x.kind == "store" and x.rd & vw, 2)
            if ins.kind in VAL:
                need(lambda x: x.kind == "mfma" and x.wr & (vr | vw), 12)
                need(lambda x: x.kind == "mfma" and (x.rd & vw) and (x.rd & x.wr & vw), 7)
                need(lambda x: x.kind == "store" and x.rd & vw, 2)
                need(lambda x: x.kind in VAL and x.wr & sr, 2)
                if ins.kind != "trans":
                    need(lambda x: x.kind == "trans" and x.wr & vr, 1)
                if ins.kind == "perm":
                    need(lambda x: x.kind in VAL and x.wr & vr, 2)
                if "readfirstlane" in ins.text:
                    need(lambda x: x.kind in VAL and x.wr & vr, 1)
            if ins.kind in ("dsr", "dsw", "store", "dma"):
                need(lambda x: x.kind == "mfma" and x.wr & (vr | vw), 12)
                need(lambda x: x.kind == "store" and x.rd & vw, 1)
            if ins.kind in ("store", "dma"):
                need(lambda x: x.kind in VAL and x.wr & sr, 5)
            if ins.kind == "dma":
                need(lambda x: x.kind == "salu" and "m0" in x.wr, 1)
            if ins.kind == "salu":
                need(lambda x: x.kind in VAL and x.wr & sr, 4)
            if req:
                out.append(nop(req - 1)); nins += 1
            out.append(ins)
        g.L = out
        g.nnops = nins

    def emit(g):
        o = g.o
        lines = []
        A = lines.append
        A(f"; @launch grid=(256,1,1) block=(256,1,1) lds=163840")
        A("; generated by gen.py: " + " ".join(sys.argv[1:]))
        A('.amdgcn_target "amdgcn-amd-amdhsa--gfx950"')
        A(".text")
        A(f".globl {NAME}")
        A(".p2align 8")
        A(f".type {NAME},@function")
        A(f"{NAME}:")
        for ins in g.L:
            A("    " + ins.text)
        if o.stamp:
            A("    s_load_dwordx2 s[72:73], s[0:1], 48")
            A("    s_waitcnt lgkmcnt(0)")
            A(f"    s_lshl_b32 s62, s2, 2")
            A(f"    s_add_u32 s62, s62, {g.sW}")
            A(f"    s_lshl_b32 s62, s62, 8")
            A("    v_lshlrev_b32 v13, 2, v0")
            A("    v_add_u32 v13, s62, v13")
            A(f"    v_writelane_b32 v12, s{g.sSTAMP}, 0")
            A("    s_getreg_b32 s62, hwreg(HW_REG_XCC_ID)")
            A("    s_nop 3")
            A(f"    v_writelane_b32 v12, s62, 63")
            A("    s_memrealtime s[62:63]")
            A("    s_waitcnt lgkmcnt(0)")
            A(f"    v_writelane_b32 v12, s62, 62")
            A("    s_nop 3")
            A("    global_store_dword v13, v12, s[72:73]")
        A("L_end:")
        A("    s_endpgm")
        A('.section .rodata,"a"')
        A(".p2align 6")
        A(f".amdhsa_kernel {NAME}")
        A("  .amdhsa_next_free_vgpr 352")
        A("  .amdhsa_next_free_sgpr 102")
        A("  .amdhsa_accum_offset 256")
        A("  .amdhsa_group_segment_fixed_size 0")
        A("  .amdhsa_kernarg_size 56")
        A("  .amdhsa_user_sgpr_count 2")
        A("  .amdhsa_user_sgpr_kernarg_segment_ptr 1")
        A("  .amdhsa_system_sgpr_workgroup_id_x 1")
        A(".end_amdhsa_kernel")
        return "\n".join(lines) + "\n"

def valu3c(d, a, b):
    return I(f"v_cvt_pk_bf16_f32 {d}, {a}, {b}", "valu", 4, [a, b], [d])

def main():
    ap = argparse.ArgumentParser()
    ap.add_argument("-o", dest="out", default="-")
    ap.add_argument("--widths", default="128,64,64")
    ap.add_argument("--order", default="B0,C0,P0,B1,P1,B2,P2,B3,A3")
    ap.add_argument("--la", type=int, default=5)
    ap.add_argument("--budk", type=int, default=28)
    ap.add_argument("--budv", type=int, default=24)
    ap.add_argument("--vbar", type=int, default=12)
    ap.add_argument("--vbar_wide", type=int, default=16)
    ap.add_argument("--dma_per_gap", type=int, default=1)
    ap.add_argument("--dma_pre", type=int, default=3)
    ap.add_argument("--dmacost", type=int, default=8)
    ap.add_argument("--dswcost", type=int, default=12)
    ap.add_argument("--maxfly", type=int, default=0)
    ap.add_argument("--pair", type=int, default=2)
    ap.add_argument("--map", type=int, default=0)
    ap.add_argument("--qhint", default="")
    ap.add_argument("--khint", default="")
    ap.add_argument("--vhint", default="")
    ap.add_argument("--ohint", default="")
    ap.add_argument("--skel", type=int, default=0)
    ap.add_argument("--stamp", type=int, default=0)
    ap.add_argument("--stats", type=int, default=0)
    o = ap.parse_args()
    g = Gen(o)
    g.build()
    if o.skel: g.skeletonize()
    g.resolve_waits()
    g.hazards()
    txt = g.emit()
    if o.out == "-": sys.stdout.write(txt)
    else: open(o.out, "w").write(txt)
    from collections import Counter
    c = Counter(i.kind for i in g.L)
    sys.stderr.write(f"instr {len(g.L)} {dict(c)} nops_inserted {g.nnops} bars {g.bars}\n")

if __name__ == "__main__":
    main()
```

```python
import sys
name = "standalone__sliding_window_attn__prompt_kernel"
out, main = sys.argv[1], sys.argv[2]
seq = sys.argv[3:]
s = open(main).read()
first, body = s.split("\n",1)
lds = first.split("lds=")[1].strip()
def kd(n, vg=16):
    return f"""
.p2align 6
.amdhsa_kernel {n}
  .amdhsa_next_free_vgpr {vg}
  .amdhsa_next_free_sgpr 32
  .amdhsa_accum_offset {vg}
  .amdhsa_group_segment_fixed_size 0
  .amdhsa_kernarg_size 56
  .amdhsa_user_sgpr_count 2
  .amdhsa_user_sgpr_kernarg_segment_ptr 1
  .amdhsa_system_sgpr_workgroup_id_x 1
.end_amdhsa_kernel
"""
def hdr(n):
    return f"""
.globl {n}
.p2align 8
.type {n},@function
{n}:
"""
def rd(n, hint):
    return hdr(n) + f"""    s_cmp_ge_u32 s2, 4096
    s_cbranch_scc1 L_done_{n}
    s_load_dwordx4 s[4:7], s[0:1], 0
    s_load_dwordx2 s[8:9], s[0:1], 16
    s_load_dwordx2 s[10:11], s[0:1], 48
    s_lshl_b32 s3, s2, 12
    v_lshlrev_b32 v1, 4, v0
    v_add_u32 v1, s3, v1
    s_waitcnt lgkmcnt(0)
    global_load_dwordx4 v[2:5], v1, s[4:5] {hint}
    global_load_dwordx4 v[6:9], v1, s[6:7] {hint}
    global_load_dwordx4 v[10:13], v1, s[8:9] {hint}
    s_waitcnt vmcnt(0)
    v_xor_b32 v2, v2, v6
    v_xor_b32 v2, v2, v10
    v_xor_b32 v2, v2, v3
    v_cmp_eq_u32 vcc, 0x12345678, v2
    s_and_saveexec_b64 s[12:13], vcc
    s_cbranch_execz L_done_{n}
    global_store_dwordx4 v1, v[2:5], s[10:11]
L_done_{n}:
    s_endpgm
"""
ker = {
 "empty": (hdr("empty_kernel") + "    s_endpgm\n", "empty_kernel", "grid=(256,1,1) block=(256,1,1) lds=0"),
 "spin": (hdr("spin_kernel") + """    s_mov_b32 s4, 800
L_spin:
    v_add_f32 v1, v1, v1
    v_add_f32 v2, v2, v2
    v_add_f32 v3, v3, v3
    v_add_f32 v4, v4, v4
    s_sub_u32 s4, s4, 1
    s_cmp_lg_u32 s4, 0
    s_cbranch_scc1 L_spin
    s_endpgm
""", "spin_kernel", "grid=(256,1,1) block=(256,1,1) lds=0"),
 "rd_def": (rd("rddef_kernel", ""), "rddef_kernel", "grid=(4096,1,1) block=(256,1,1) lds=0"),
 "rd_nt": (rd("rdnt_kernel", "nt"), "rdnt_kernel", "grid=(4096,1,1) block=(256,1,1) lds=0"),
}
lines = []
text = ""; kds = ""
for k in seq:
    if k == "main":
        lines.append(f"; @launch kernel={name} grid=(256,1,1) block=(256,1,1) lds={lds}")
    else:
        t, n, l = ker[k]
        lines.append(f"; @launch kernel={n} {l}")
        if n not in text:
            text += t; kds += kd(n)
b2 = body.replace('.section .rodata,"a"', text + '.section .rodata,"a"') + kds
open(out, "w").write("\n".join(lines) + "\n" + b2)
```

```python
import sys
name = "standalone__sliding_window_attn__prompt_kernel"
out, main = sys.argv[1], sys.argv[2]
seq = sys.argv[3:]
s = open(main).read()
first, body = s.split("\n",1)
lds = first.split("lds=")[1].strip()
def kd(n, vg=16):
    return f"""
.p2align 6
.amdhsa_kernel {n}
  .amdhsa_next_free_vgpr {vg}
  .amdhsa_next_free_sgpr 32
  .amdhsa_accum_offset {vg}
  .amdhsa_group_segment_fixed_size 0
  .amdhsa_kernarg_size 56
  .amdhsa_user_sgpr_count 2
  .amdhsa_user_sgpr_kernarg_segment_ptr 1
  .amdhsa_system_sgpr_workgroup_id_x 1
.end_amdhsa_kernel
"""
def hdr(n):
    return f"""
.globl {n}
.p2align 8
.type {n},@function
{n}:
"""
def rd(n, hint):
    return hdr(n) + f"""    s_cmp_ge_u32 s2, 4096
    s_cbranch_scc1 L_done_{n}
    s_load_dwordx4 s[4:7], s[0:1], 0
    s_load_dwordx2 s[8:9], s[0:1], 16
    s_load_dwordx2 s[10:11], s[0:1], 48
    s_lshl_b32 s3, s2, 12
    v_lshlrev_b32 v1, 4, v0
    v_add_u32 v1, s3, v1
    s_waitcnt lgkmcnt(0)
    global_load_dwordx4 v[2:5], v1, s[4:5] {hint}
    global_load_dwordx4 v[6:9], v1, s[6:7] {hint}
    global_load_dwordx4 v[10:13], v1, s[8:9] {hint}
    s_waitcnt vmcnt(0)
    v_xor_b32 v2, v2, v6
    v_xor_b32 v2, v2, v10
    v_xor_b32 v2, v2, v3
    v_cmp_eq_u32 vcc, 0x12345678, v2
    s_and_saveexec_b64 s[12:13], vcc
    s_cbranch_execz L_done_{n}
    global_store_dwordx4 v1, v[2:5], s[10:11]
L_done_{n}:
    s_endpgm
"""
def touch(n):
    return hdr(n) + f"""    s_cmp_ge_u32 s2, 256
    s_cbranch_scc1 L_done_{n}
    s_load_dwordx4 s[4:7], s[0:1], 0
    s_load_dwordx2 s[8:9], s[0:1], 16
    s_load_dwordx2 s[10:11], s[0:1], 32
    s_and_b32 s12, s2, 7
    s_lshr_b32 s13, s2, 3
    s_and_b32 s14, s13, 15
    s_lshr_b32 s13, s13, 4
    s_lshl_b32 s12, s12, 1
    s_add_u32 s12, s12, s13
    s_lshl_b32 s12, s12, 20          ; head offset
    s_lshl_b32 s15, s14, 16          ; j*64KB
    v_lshrrev_b32 v1, 6, v0
    v_and_b32 v2, 63, v0
    v_readfirstlane_b32 s16, v1
    v_lshlrev_b32 v3, 12, v2         ; idx*4096
    s_waitcnt lgkmcnt(0)
    ; select base pointer by wave
    s_cmp_eq_u32 s16, 1
    s_cselect_b32 s4, s6, s4
    s_cselect_b32 s5, s7, s5
    s_cmp_eq_u32 s16, 2
    s_cselect_b32 s4, s8, s4
    s_cselect_b32 s5, s9, s5
    s_cmp_eq_u32 s16, 3
    s_cselect_b32 s4, s10, s4
    s_cselect_b32 s5, s11, s5
    s_add_u32 s4, s4, s12
    s_addc_u32 s5, s5, 0
    s_mov_b32 s6, 0x100000
    s_mov_b32 s7, 0x20000
    ; waves 1,2: start at j*64K - 128K (48 entries) ; waves 0,3: start j*64K (16 entries)
    s_sub_u32 s17, s15, 0x20000
    s_add_u32 s18, s16, 1
    s_and_b32 s18, s18, 2            ; 2 for waves 1,2
    s_cmp_eq_u32 s18, 2
    s_cselect_b32 s17, s17, s15
    s_cselect_b32 s19, 48, 16
    v_add_u32 v3, s17, v3
    v_cmp_gt_u32 vcc, s19, v2
    s_and_saveexec_b64 s[20:21], vcc
    s_cbranch_execz L_done_{n}
    buffer_load_dword v4, v3, s[4:7], 0 offen
    s_waitcnt vmcnt(0)
L_done_{n}:
    s_endpgm
"""
ker = {
 "touch": (touch("touch_kernel"), "touch_kernel", "grid=(256,1,1) block=(256,1,1) lds=0"),
 "emptybig": (hdr("emptybig_kernel") + "    s_endpgm\n", "emptybig_kernel", "grid=(256,1,1) block=(256,1,1) lds=163840"),
 "empty": (hdr("empty_kernel") + "    s_endpgm\n", "empty_kernel", "grid=(256,1,1) block=(256,1,1) lds=0"),
 "spin": (hdr("spin_kernel") + """    s_mov_b32 s4, 800
L_spin:
    v_add_f32 v1, v1, v1
    v_add_f32 v2, v2, v2
    v_add_f32 v3, v3, v3
    v_add_f32 v4, v4, v4
    s_sub_u32 s4, s4, 1
    s_cmp_lg_u32 s4, 0
    s_cbranch_scc1 L_spin
    s_endpgm
""", "spin_kernel", "grid=(256,1,1) block=(256,1,1) lds=0"),
 "rd_def": (rd("rddef_kernel", ""), "rddef_kernel", "grid=(4096,1,1) block=(256,1,1) lds=0"),
 "rd_nt": (rd("rdnt_kernel", "nt"), "rdnt_kernel", "grid=(4096,1,1) block=(256,1,1) lds=0"),
}
lines = []
text = ""; kds = ""
for k in seq:
    if k == "main":
        lines.append(f"; @launch kernel={name} grid=(256,1,1) block=(256,1,1) lds={lds}")
    else:
        t, n, l = ker[k]
        lines.append(f"; @launch kernel={n} {l}")
        if n not in text:
            text += t; kds += (kd(n, 256).replace("next_free_vgpr 256", "next_free_vgpr 352") if n == "emptybig_kernel" else kd(n))
b2 = body.replace('.section .rodata,"a"', text + '.section .rodata,"a"') + kds
open(out, "w").write("\n".join(lines) + "\n" + b2)
```
